```python
import torch

def _softmax(x, axis=-1):
    return torch.softmax(x, dim=axis)
def _gelu(x):
    return torch.nn.functional.gelu(x, approximate="tanh")
def _silu(x):
    return torch.nn.functional.silu(x)
def _sigmoid(x):
    return torch.sigmoid(x)
def _layernorm(x, axis=-1, eps=1e-5):
    m = x.mean(dim=axis, keepdim=True)
    v = x.var(dim=axis, keepdim=True, unbiased=False)
    return (x - m) / torch.sqrt(v + eps)
def _scatter_add(tgt, idx, src, axis=0):
    return tgt.clone().index_add_(axis, idx, src)
def _segment_sum(src, seg, n):
    out = torch.zeros((n,) + src.shape[1:], dtype=src.dtype)
    return out.index_add_(0, seg, src)
def _pad(x, pw):
    flat = tuple(v for pair in reversed(pw) for v in pair)
    return torch.nn.functional.pad(x, flat)

kernel_name = 'interleave_layers__softmax_full_mha__dense_activation_mish__prompt'

def setup_inputs():

    _w = (lambda a: (lambda t: t.to(torch.bfloat16) if t.is_floating_point() else t)(torch.as_tensor(a)))
    def _A_setup():
        B, S, D = 1, 2048, 512
        return {
            "x": _w((lambda *s: torch.randn(*s, dtype=torch.bfloat16) * 0.05)(B, S, D)),
            "wqkv": _w((lambda *s: torch.randn(*s, dtype=torch.bfloat16) * 0.05)(D, 3 * D)),
            "wo": _w((lambda *s: torch.randn(*s, dtype=torch.bfloat16) * 0.05)(D, D)),
        }
    _A_in = _A_setup()

    def _B_setup():
        B, S, D, F = 1, 2048, 512, 1376
        return {
            "x": _w((lambda *s: torch.randn(*s, dtype=torch.bfloat16) * 0.05)(B, S, D)),
            "w1": _w((lambda *s: torch.randn(*s, dtype=torch.bfloat16) * 1.6)(D, F) * (D ** -0.5)),
            "b1": _w((lambda *s: torch.randn(*s, dtype=torch.bfloat16) * 0.2)(F)),
            "w2": _w((lambda *s: torch.randn(*s, dtype=torch.bfloat16) * 0.2)(F, D) * (F ** -0.5)),
        }
    _B_in = _B_setup()

    return {
        "A_x": _A_in["x"],
        "A_wqkv": _A_in["wqkv"],
        "A_wo": _A_in["wo"],
        "B_x": _B_in["x"],
        "B_w1": _B_in["w1"],
        "B_b1": _B_in["b1"],
        "B_w2": _B_in["w2"],
    }

def reference(A_x, A_wqkv, A_wo, B_x, B_w1, B_b1, B_w2):
    def _A_ref(x, wqkv, wo):
        B, S, D = x.shape
        H = 32; Dh = D // H
        qkv = (lambda x, *d: x.permute(*d))((x @ wqkv).reshape(B, S, 3, H, Dh), 2, 0, 3, 1, 4)
        q, k, v = qkv[0], qkv[1], qkv[2]
        scale = Dh ** -0.5
        scores = torch.einsum("bhqd,bhkd->bhqk", q, k) * scale
        p = _softmax(scores, axis=-1)
        o = torch.einsum("bhqk,bhkd->bhqd", p, v)
        return (lambda x, *d: x.permute(*d))(o, 0, 2, 1, 3).reshape(B, S, D) @ wo

    def _B_ref(x, w1, b1, w2):
        h = torch.einsum("bsd,df->bsf", x, w1) + b1
        sp = torch.log1p(torch.exp(-torch.abs(h))) + torch.where(h > 0, h, torch.zeros_like(h))
        act = h * torch.tanh(sp)
        return torch.einsum("bsf,fd->bsd", act, w2)

    x = A_x
    x = x + _A_ref(_layernorm(x, axis=-1), A_wqkv, A_wo)
    x = x + _B_ref(_layernorm(x, axis=-1), B_w1, B_b1, B_w2)
    x = x + _A_ref(_layernorm(x, axis=-1), A_wqkv, A_wo)
    x = x + _B_ref(_layernorm(x, axis=-1), B_w1, B_b1, B_w2)
    return x
```

```python
import re

TRANS = ("v_exp_f32", "v_log_f32", "v_rcp_f32", "v_rsq_f32", "v_sqrt_f32", "v_sin_f32", "v_cos_f32",
         "v_exp_f16", "v_rcp_f16", "v_rcp_iflag_f32")

def _regs(tok):
    t = tok.strip()
    t = t.lstrip("-")
    if t.startswith("abs(") and t.endswith(")"): t = t[4:-1]
    if t.startswith("|") and t.endswith("|"): t = t[1:-1]
    m = re.fullmatch(r"([vas])(\d+)", t)
    if m: return {(m.group(1), int(m.group(2)))}
    m = re.fullmatch(r"([vas])\[(\d+):(\d+)\]", t)
    if m: return {(m.group(1), i) for i in range(int(m.group(2)), int(m.group(3)) + 1)}
    if t == "vcc": return {("s", "vcc")}
    if t in ("vcc_lo", "vcc_hi"): return {("s", "vcc")}
    if t in ("exec", "exec_lo", "exec_hi"): return {("s", "exec")}
    if t == "m0": return {("s", "m0")}
    return set()

class Ins:
    __slots__ = ("text", "op", "kind", "wr", "rd", "passes", "srcC", "srcAB", "dst_first", "is_trans", "is_dpp",
                 "is_perm", "is_readlane", "is_dot", "store_data", "is_dma", "nop", "target", "label")
    def __init__(self, text):
        self.text = text
        self.label = None
        self.target = None
        self.nop = 1
        self.wr = set(); self.rd = set(); self.srcC = set(); self.srcAB = set(); self.store_data = set()
        self.passes = 0; self.dst_first = None
        self.is_trans = self.is_dpp = self.is_perm = self.is_readlane = self.is_dot = self.is_dma = False
        body = text.split(";")[0].strip()
        if body.endswith(":"):
            self.kind = "label"; self.label = body[:-1]; self.op = ""; self.nop = 0; return
        if body == "" or body.startswith("."):
            self.kind = "dir"; self.op = ""; self.nop = 0; return
        parts = body.split(None, 1)
        op = parts[0]; self.op = op
        rest = parts[1] if len(parts) > 1 else ""
        ops = []; cur = ""; depth = 0
        for ch in rest:
            if ch in "[(": depth += 1
            if ch in "])": depth -= 1
            if ch == "," and depth == 0: ops.append(cur); cur = ""
            else: cur += ch
        ops.append(cur)
        mods = ""
        if ops:
            last = ops[-1].strip().split(None, 1)
            if last:
                ops[-1] = last[0]
                mods = last[1] if len(last) > 1 else ""
        ops = [o.strip() for o in ops if o.strip()]
        R = [_regs(o) for o in ops]
        base = re.sub(r"_(e32|e64|dpp|sdwa)$", "", op)
        if op.startswith("v_mfma") or op.startswith("v_smfmac"):
            self.kind = "mfma"
            self.passes = 8 if "32x32" in op else 4
            self.wr = set(R[0]); self.srcAB = R[1] | R[2]
            if op.startswith("v_smfmac"):
                self.srcC = set(R[0]); self.srcAB |= R[3]
            else:
                self.srcC = set(R[3])
            self.rd = self.srcAB | self.srcC
        elif op.startswith("v_"):
            self.kind = "valu"
            self.is_trans = base in TRANS
            self.is_dpp = op.endswith("_dpp") or "row_" in mods or "quad_perm" in mods
            self.is_perm = base.startswith("v_permlane")
            self.is_readlane = base in ("v_readlane_b32", "v_readfirstlane_b32")
            self.is_dot = base.startswith("v_dot")
            if base == "v_nop":
                pass
            elif self.is_perm:
                self.wr = R[0] | R[1]; self.rd = R[0] | R[1]
            elif base in ("v_add_co_u32", "v_sub_co_u32", "v_addc_co_u32", "v_subb_co_u32", "v_subrev_co_u32"):
                self.wr = R[0] | R[1]
                for r in R[2:]: self.rd |= r
            else:
                self.wr = set(R[0])
                for r in R[1:]: self.rd |= r
                if base.startswith("v_cmpx"): self.wr |= {("s", "exec")}
                if base in ("v_fmac_f32", "v_dot2c_f32_bf16", "v_pk_fmac_f16", "v_writelane_b32") or self.is_dpp:
                    self.rd |= R[0]
                if base == "v_cndmask_b32" and len(ops) == 3: self.rd |= {("s", "vcc")}
        elif op.startswith("buffer_") or op.startswith("global_") or op.startswith("flat_"):
            self.kind = "vmem"
            allm = mods.split()
            if op in ("buffer_wbl2", "buffer_inv"):
                pass
            elif "load" in op and ("lds" in allm or "_lds_" in op):
                self.is_dma = True
                for r in R: self.rd |= r
                self.rd |= {("s", "m0")}
            elif "load" in op:
                self.wr = set(R[0])
                for r in R[1:]: self.rd |= r
            elif "store" in op:
                for r in R: self.rd |= r
                d = R[0] if op.startswith("buffer_") else R[1]
                if len(d) >= 3: self.store_data = set(d)
            else:
                for r in R: self.rd |= r
                if "sc0" in allm: self.wr = set(R[0])
        elif op.startswith("ds_"):
            self.kind = "ds"
            if "read" in op or "permute" in op or "swizzle" in op or "_rtn" in op:
                self.wr = set(R[0])
                for r in R[1:]: self.rd |= r
            else:
                for r in R: self.rd |= r
        else:
            self.kind = "salu"
            if op == "s_nop":
                self.nop = int(ops[0], 0) + 1
            elif op.startswith("s_cbranch") or op == "s_branch":
                self.target = ops[0]
            elif op.startswith("s_cmp") or op in ("s_waitcnt", "s_barrier", "s_endpgm", "s_sleep", "s_setprio", "s_setpc_b64"):
                for r in R: self.rd |= r
            elif R:
                self.wr = set(R[0])
                for r in R[1:]: self.rd |= r
                if "saveexec" in op: self.wr |= {("s", "exec")}

def _vec(s): return {r for r in s if r[0] in "va"}
def _sca(s): return {r for r in s if r[0] == "s"}

def need(p, c):
    n = 0
    if p.kind == "valu":
        pv = _vec(p.wr); ps = _sca(p.wr)
        if pv:
            if c.kind == "mfma" and pv & c.rd: n = max(n, 3 if p.is_dot else 2)
            if c.kind == "valu":
                if p.is_trans and not c.is_trans and pv & c.rd: n = max(n, 1)
                if (c.is_perm or c.is_dpp) and pv & c.rd: n = max(n, 2)
                if c.is_readlane and pv & c.rd: n = max(n, 1)
                if p.is_dot:
                    if c.op == p.op:
                        ab = c.rd - c.wr
                        if pv & ab: n = max(n, 3)
                    elif pv & (c.rd | c.wr): n = max(n, 3)
            if p.is_dot and c.kind in ("vmem", "ds") and pv & c.rd: n = max(n, 3)
        if ps:
            if c.kind == "vmem" and ps & c.rd: n = max(n, 5)
            if c.kind == "valu" and ps & c.rd: n = max(n, 4 if c.is_readlane or c.op.startswith("v_writelane") else 2)
            if c.kind == "salu" and ps & c.rd: n = max(n, 1)
            if ("s", "exec") in ps and c.kind in ("mfma", "valu"): n = max(n, 5)
    elif p.kind == "mfma":
        big = {4: 8, 8: 12}[p.passes]
        if c.kind == "mfma":
            if p.wr & c.srcAB: n = max(n, big)
            if p.wr & c.srcC:
                if not (p.wr == c.srcC and p.passes == c.passes): n = max(n, {4: 6, 8: 10}[p.passes])
            if (p.wr & c.wr) and not (p.wr & c.srcC) and p.passes != c.passes: n = max(n, big)
        elif c.kind in ("valu", "vmem", "ds"):
            if p.wr & (c.rd | c.wr): n = max(n, big)
            if c.kind == "valu" and p.srcC & c.wr: n = max(n, {4: 3, 8: 7}[p.passes])
    elif p.kind == "vmem":
        if p.store_data and c.kind in ("valu", "mfma") and p.store_data & c.wr: n = max(n, 2)
        if p.store_data and c.kind in ("vmem", "ds") and p.store_data & c.wr: n = max(n, 1)
    elif p.kind == "salu":
        if ("s", "m0") in p.wr and c.is_dma: n = max(n, 1)
    return n

WINDOW = 14

def _deficit(prev, c):
    dist = 0; worst = 0
    for p in reversed(prev):
        if p.nop == 0: continue
        r = need(p, c)
        if r > dist: worst = max(worst, r - dist)
        dist += p.nop
        if dist >= WINDOW: break
    return worst

def fix_hazards(lines, report=False):
    ins = [Ins(l) for l in lines]
    out = []
    added = 0
    for c in ins:
        if c.nop:
            prev = []
            for p in reversed(out[-40:]):
                if p.op in ("s_branch", "s_endpgm", "s_setpc_b64"): break
                prev.append(p)
            prev.reverse()
            d = _deficit(prev, c)
            if d:
                out.append(Ins(f"    s_nop {d-1}")); added += d
                if report: print("nop", d, "before", c.text.strip())
        out.append(c)
    labels = {x.label: i for i, x in enumerate(out) if x.kind == "label"}
    res = []
    for i, b in enumerate(out):
        if b.target in labels:
            prev = []
            for p in reversed(out[max(0, i - 40):i]):
                if p.op in ("s_branch", "s_endpgm", "s_setpc_b64"): break
                prev.append(p)
            prev.reverse()
            seq = prev + [b]
            worst = 0; k = labels[b.target]; cnt = 0
            while k < len(out) and cnt < WINDOW:
                c = out[k]; k += 1
                if c.nop == 0: continue
                worst = max(worst, _deficit(seq, c))
                seq = seq + [c]; cnt += c.nop
                if c.op in ("s_branch", "s_endpgm"): break
            if worst:
                res.append(Ins(f"    s_nop {worst-1}")); added += worst
                if report: print("nop", worst, "before branch", b.text.strip())
        res.append(b)
    return [x.text for x in res], added

class Asm:
    def __init__(self):
        self.lines = []
    def __call__(self, s):
        for l in s.split("\n"):
            l = l.strip()
            if not l: continue
            if l.endswith(":") or l.startswith("."): self.lines.append(l)
            else: self.lines.append("    " + l)
    def c(self, s): self.lines.append("    ; " + s)

def vr(n, k=1, f="v"):
    return f"{f}{n}" if k == 1 else f"{f}[{n}:{n+k-1}]"
def ar(n, k=1): return vr(n, k, "a")
def sr(n, k=1): return vr(n, k, "s")
```

```python
import sys
from asmlib import *

NAME = "interleave_layers__softmax_full_mha__dense_activation_mish__prompt"
WQ = 0x0000000; WO = 0x0180000; W1 = 0x0200000; W2 = 0x0380000
XA = 0x0500000; X1 = 0x0900000; OO = 0x0D00000; HH = 0x1100000
QQ = 0x1D00000; KV = 0x2100000; ST = 0x2B00000; WS_END = 0x2C00000
KVT = 2176
KVH = 64 * KVT
KVL = 0x500000
HTB = 96 * 1024
HL = 64 * HTB
LOG2E = 1.4426950408889634
def f2u(x):
    import struct; return struct.unpack("<I", struct.pack("<f", x))[0]

A = Asm()
kernels = []
def kernel(label, arch, acc):
    kernels.append((label, arch + acc, arch))
    A(f".globl {label}\n.p2align 8\n.type {label},@function\n{label}:")

def ws_srd(nwg):
    A(f"""s_cmp_ge_u32 s2, {nwg}
    s_cbranch_scc1 L_end
    s_load_dwordx2 s[4:5], s[0:1], 72
    s_mov_b32 s6, {WS_END}
    s_mov_b32 s7, 0x00020000""")

def wave_id(s):
    A(f"""v_lshrrev_b32 v1, 6, v0
    v_readfirstlane_b32 s{s}, v1
    v_and_b32 v0, 63, v0""")

def chain_role(sc, sj):
    A(f"""s_and_b32 s{sc}, s2, 7
    s_lshl_b32 s{sc}, s{sc}, 2
    s_lshr_b32 s{sj}, s2, 6
    s_add_u32 s{sc}, s{sc}, s{sj}
    s_lshr_b32 s{sj}, s2, 3
    s_and_b32 s{sj}, s{sj}, 7""")

def gen_prep():
    kernel("prep_kernel", 64, 0)
    ws_srd(376)
    A("""s_load_dwordx4 s[16:19], s[0:1], 0
    s_load_dwordx2 s[20:21], s[0:1], 16
    s_load_dwordx2 s[22:23], s[0:1], 32
    s_load_dwordx2 s[24:25], s[0:1], 48""")
    wave_id(12)
    A("""s_lshl_b32 s13, s2, 2
    s_add_u32 s13, s13, s12
    s_mov_b32 s11, 0x00020000
    s_waitcnt lgkmcnt(0)
    s_cmp_ge_u32 s13, 1248
    s_cbranch_scc1 L_prep_x""")
    A(f"""s_cmp_ge_u32 s13, 896
    s_cbranch_scc1 L_prep_w2
    s_cmp_ge_u32 s13, 512
    s_cbranch_scc1 L_prep_w1
    s_cmp_ge_u32 s13, 384
    s_cbranch_scc1 L_prep_wo
    s_mov_b32 s8, s18
    s_mov_b32 s9, s19
    s_mov_b32 s10, {512*1536*2}
    s_and_b32 s14, s13, 15
    s_lshr_b32 s15, s13, 4
    s_mov_b32 s26, 3072
    s_mov_b32 s27, 1536
    s_mov_b32 s28, {WQ}
    s_mov_b32 s29, 16
    s_branch L_prep_w
L_prep_wo:
    s_sub_u32 s13, s13, 384
    s_mov_b32 s8, s20
    s_mov_b32 s9, s21
    s_mov_b32 s10, {512*512*2}
    s_and_b32 s14, s13, 15
    s_lshr_b32 s15, s13, 4
    s_mov_b32 s26, 1024
    s_mov_b32 s27, 512
    s_mov_b32 s28, {WO}
    s_mov_b32 s29, 16
    s_branch L_prep_w
L_prep_w1:
    s_sub_u32 s13, s13, 512
    s_mov_b32 s8, s22
    s_mov_b32 s9, s23
    s_mov_b32 s10, {512*1376*2}
    s_and_b32 s14, s13, 15
    s_lshr_b32 s15, s13, 4
    s_mov_b32 s26, 2752
    s_mov_b32 s27, 1376
    s_mov_b32 s28, {W1}
    s_mov_b32 s29, 16
    s_branch L_prep_w
L_prep_w2:
    s_sub_u32 s13, s13, 896
    s_mov_b32 s8, s24
    s_mov_b32 s9, s25
    s_mov_b32 s10, {1376*512*2}
    s_lshr_b32 s14, s13, 3
    s_and_b32 s15, s13, 7
    s_mov_b32 s26, 1024
    s_mov_b32 s27, 512
    s_mov_b32 s28, {W2}
    s_mov_b32 s29, 44
L_prep_w:""")
    A("""v_lshrrev_b32 v1, 3, v0
    v_and_b32 v2, 7, v0
    s_lshl_b32 s30, s14, 5
    v_add_u32 v3, s30, v1
    v_mul_lo_u32 v3, v3, s26
    s_lshl_b32 s30, s15, 6
    v_lshlrev_b32 v4, 3, v2
    v_add_u32 v4, s30, v4
    v_lshl_add_u32 v3, v4, 1, v3
    v_cmp_gt_u32 vcc, s27, v4
    v_mov_b32 v5, 0x7ff00000
    v_cndmask_b32 v3, v5, v3, vcc
    s_lshl_b32 s31, s26, 3
    s_mov_b32 s30, 0""")
    for i in range(4):
        A(f"buffer_load_dwordx4 v[{16+4*i}:{19+4*i}], v3, s[8:11], s30 offen")
        if i < 3: A("s_add_u32 s30, s30, s31")
    A("""s_lshl_b32 s30, s12, 12
    v_lshlrev_b32 v6, 4, v0
    v_add_u32 v6, s30, v6
    v_lshrrev_b32 v7, 4, v0
    v_lshlrev_b32 v7, 10, v7
    v_and_b32 v8, 15, v0
    v_lshrrev_b32 v9, 2, v8
    v_lshl_add_u32 v7, v9, 7, v7
    v_and_b32 v8, 3, v8
    v_lshl_add_u32 v7, v8, 3, v7
    v_add_u32 v7, s30, v7
    s_waitcnt vmcnt(0)""")
    for i in range(4): A(f"ds_write_b128 v6, v[{16+4*i}:{19+4*i}] offset:{i*1024}")
    A("s_waitcnt lgkmcnt(0)")
    for f in range(4):
        A(f"ds_read_b64_tr_b16 v[{32+4*f}:{33+4*f}], v7 offset:{f*32}")
        A(f"ds_read_b64_tr_b16 v[{34+4*f}:{35+4*f}], v7 offset:{f*32+512}")
    A("""s_lshl_b32 s30, s15, 2
    s_mul_i32 s30, s30, s29
    s_add_u32 s30, s30, s14
    s_lshl_b32 s30, s30, 10
    s_add_u32 s30, s30, s28
    s_lshl_b32 s31, s29, 10
    v_lshlrev_b32 v6, 4, v0
    s_waitcnt lgkmcnt(0)""")
    for f in range(4):
        A(f"buffer_store_dwordx4 v[{32+4*f}:{35+4*f}], v6, s[4:7], s30 offen")
        if f < 3: A("s_add_u32 s30, s30, s31")
    A("s_endpgm")
    A(f"""L_prep_x:
    s_sub_u32 s13, s13, 1248
    s_mov_b32 s8, s16
    s_mov_b32 s9, s17
    s_mov_b32 s10, {2048*512*2}
    v_lshrrev_b32 v1, 3, v0
    v_and_b32 v2, 7, v0
    s_lshl_b32 s30, s13, 3
    v_add_u32 v1, s30, v1
    v_lshlrev_b32 v3, 10, v1
    v_lshl_add_u32 v3, v2, 4, v3""")
    for j in range(8): A(f"buffer_load_dwordx4 v[{16+4*j}:{19+4*j}], v3, s[8:11], 0 offen offset:{j*128}")
    A(f"""v_lshrrev_b32 v4, 5, v1
    v_lshlrev_b32 v4, 15, v4
    v_and_b32 v5, 31, v1
    v_lshl_add_u32 v4, v5, 4, v4
    v_lshl_add_u32 v4, v2, 9, v4
    v_mov_b32 v8, 0
    v_mov_b32 v9, 0
    v_mov_b32 v10, 0x3f803f80
    v_mov_b32 v11, 0x3f803f80
    v_mov_b32 v12, 0x3f803f80
    v_mov_b32 v13, 0x3f803f80
    v_lshlrev_b32 v6, 6, v1
    v_lshl_add_u32 v6, v2, 3, v6
    s_mov_b32 s30, {XA}
    s_waitcnt vmcnt(0)""")
    for j in range(8):
        A(f"buffer_store_dwordx4 v[{16+4*j}:{19+4*j}], v4, s[4:7], s30 offen")
        if j < 7: A("s_add_u32 s30, s30, 4096")
        for r in range(4):
            A(f"v_dot2c_f32_bf16 v8, v{16+4*j+r}, v10")
            A(f"v_dot2c_f32_bf16 v9, v{16+4*j+r}, v{16+4*j+r}")
    A(f"""s_mov_b32 s30, {ST}
    buffer_store_dwordx2 v[8:9], v6, s[4:7], s30 offen""")
    A(f"""s_mov_b32 s31, {KVT}
    v_mul_lo_u32 v7, v1, s31
    v_lshl_add_u32 v7, v2, 4, v7
    s_mov_b32 s30, {KV+2048}
    buffer_store_dwordx4 v[10:13], v7, s[4:7], s30 offen
    s_mov_b32 s30, {KV+KVL+2048}
    buffer_store_dwordx4 v[10:13], v7, s[4:7], s30 offen
    s_endpgm""")

def stubs(base, arch, acc):
    for l in range(2):
        kernel(f"{base}{l}_kernel", arch, acc)
        A(f"s_mov_b32 s3, {l}\ns_branch L_{base}")
    A(f".p2align 6\nL_{base}:")

def allreduce_g(v, t):
    A(f"""v_mov_b32 v{t}, v{v}
    v_permlane32_swap_b32 v{v}, v{t}
    v_add_f32 v{v}, v{v}, v{t}
    v_mov_b32 v{t}, v{v}
    v_permlane16_swap_b32 v{v}, v{t}
    v_add_f32 v{v}, v{v}, v{t}""")

def gen_lngemm(kind):
    qkv = kind == "qkv"
    stubs(kind, 128, 192)
    ws_srd(256)
    if not qkv:
        A("s_load_dwordx2 s[8:9], s[0:1], 40\ns_mov_b32 s10, 2752\ns_mov_b32 s11, 0x00020000")
    wave_id(12)
    chain_role(13, 14)
    A("s_lshl_b32 s15, s14, 2\ns_add_u32 s15, s15, s12")
    A("v_lshlrev_b32 v2, 4, v0")
    A("s_waitcnt lgkmcnt(0)")
    src = XA if qkv else X1
    A(f"""s_lshl_b32 s16, s3, 21
    s_add_u32 s16, s16, {src}
    s_lshl_b32 s17, s13, 16
    s_add_u32 s16, s16, s17
    s_lshl_b32 s17, s12, 14
    s_add_u32 s16, s16, s17""")
    for q in range(4):
        A(f"s_add_u32 s18, s17, {q*4096}\ns_mov_b32 m0, s18\ns_add_u32 s19, s16, {q*4096}")
        for i in range(4): A(f"buffer_load_dwordx4 v2, s[4:7], s19 offen offset:{i*1024} lds")
    A(f"""v_and_b32 v3, 15, v0
    v_lshrrev_b32 v4, 4, v0
    v_lshlrev_b32 v5, 6, v3
    v_lshl_add_u32 v5, v4, 4, v5
    s_lshl_b32 s18, s3, 18
    s_add_u32 s18, s18, {ST + (0 if qkv else 0x20000)}
    s_lshl_b32 s19, s13, 12
    s_add_u32 s18, s18, s19""")
    for t in range(4): A(f"buffer_load_dwordx4 v[{16+4*t}:{19+4*t}], v5, s[4:7], s18 offen offset:{t*1024}")
    if not qkv:
        A("s_mul_i32 s18, s15, 96\nv_lshlrev_b32 v6, 3, v4")
        for p in range(3): A(f"buffer_load_dwordx2 v[{32+2*p}:{33+2*p}], v6, s[8:11], s18 offen offset:{p*32}")
    for p in range(3):
        if qkv: A(f"s_add_u32 s18, s15, {32*p}\ns_lshl_b32 s18, s18, 14\ns_add_u32 s18, s18, {WQ}")
        else: A(f"s_mul_i32 s18, s15, 3\ns_add_u32 s18, s18, {p}\ns_lshl_b32 s18, s18, 14\ns_add_u32 s18, s18, {W1}")
        for s in range(16):
            if s and s % 4 == 0: A("s_add_u32 s18, s18, 4096")
            A(f"buffer_load_dwordx4 {ar((p*16+s)*4,4)}, v2, s[4:7], s18 offen offset:{(s%4)*1024}")
    A("v_lshlrev_b32 v7, 9, v4\nv_lshl_add_u32 v7, v3, 4, v7")
    ONES = 40
    for r in range(4): A(f"v_mov_b32 v{ONES+r}, 0x3f803f80")
    A("s_waitcnt vmcnt(0)\ns_barrier")
    NM = 44; RS = 48
    for t in range(4):
        b = 16 + 4*t
        A(f"v_add_f32 v{b}, v{b}, v{b+2}\nv_add_f32 v{b+1}, v{b+1}, v{b+3}")
        allreduce_g(b, b+2); allreduce_g(b+1, b+3)
        A(f"""v_mul_f32 v{NM+t}, {hex(f2u(-1/512))}, v{b}
        v_mul_f32 v{b+1}, {hex(f2u(1/512))}, v{b+1}
        v_fma_f32 v{b+1}, -v{NM+t}, v{NM+t}, v{b+1}
        v_max_f32 v{b+1}, 0, v{b+1}
        v_add_f32 v{b+1}, {hex(f2u(1e-5))}, v{b+1}
        v_rsq_f32 v{RS+t}, v{b+1}""")
    CS = 52
    for p in range(3):
        for s in range(16):
            w = ar((p*16+s)*4, 4); c = "0" if s == 0 else vr(CS+4*p, 4)
            if qkv and p == 2: A(f"v_mfma_f32_16x16x32_bf16 {vr(CS+4*p,4)}, {vr(ONES,4)}, {w}, {c}")
            else: A(f"v_mfma_f32_16x16x32_bf16 {vr(CS+4*p,4)}, {w}, {vr(ONES,4)}, {c}")
    if qkv:
        A("s_lshl_b32 s18, s12, 9\ns_add_u32 s18, s18, 65536\nv_lshl_add_u32 v8, v3, 2, s18\nv_lshl_add_u32 v9, v4, 4, s18")
        for t in range(4):
            A(f"ds_write_b32 v8, v{NM+t} offset:{t*64}\nds_write_b32 v8, v{RS+t} offset:{256+t*64}")
        A("s_waitcnt lgkmcnt(0)")
    else:
        for p in range(3):
            for q in range(2):
                A(f"v_lshlrev_b32 v{16+4*p+2*q}, 16, v{32+2*p+q}\nv_and_b32 v{17+4*p+2*q}, 0xffff0000, v{32+2*p+q}")
    ACC = 64
    FR = 96
    for hf in range(2):
        def rd(s):
            for tt in range(2):
                A(f"ds_read_b128 {vr(FR+(s%2)*8+tt*4,4)}, v7 offset:{hf*32768+s*2048+tt*256}")
        rd(0)
        for s in range(16):
            if s < 15: rd(s+1); A("s_waitcnt lgkmcnt(2)")
            else: A("s_waitcnt lgkmcnt(0)")
            for p in range(3):
                for tt in range(2):
                    acc = vr(ACC+(p*2+tt)*4, 4); w = ar((p*16+s)*4, 4); x = vr(FR+(s%2)*8+tt*4, 4)
                    c = "0" if s == 0 else acc
                    if qkv and p == 2: A(f"v_mfma_f32_16x16x32_bf16 {acc}, {x}, {w}, {c}")
                    else: A(f"v_mfma_f32_16x16x32_bf16 {acc}, {w}, {x}, {c}")
        PK = 112
        if qkv:
            for tt in range(2):
                A(f"ds_read_b128 {vr(16+tt*8,4)}, v9 offset:{(hf*2+tt)*64}\nds_read_b128 {vr(20+tt*8,4)}, v9 offset:{256+(hf*2+tt)*64}")
            for tt in range(2): A(f"v_mul_f32 v{36+tt}, {hex(f2u(0.25*LOG2E))}, v{RS+hf*2+tt}")
            A("s_waitcnt lgkmcnt(0)")
        for p in range(3):
            for tt in range(2):
                t = hf*2+tt
                for r in range(4):
                    a = ACC+(p*2+tt)*4+r
                    if qkv and p == 2:
                        A(f"v_fma_f32 v{a}, v{CS+8}, v{16+tt*8+r}, v{a}\nv_mul_f32 v{a}, v{a}, v{20+tt*8+r}")
                    elif qkv:
                        A(f"v_fma_f32 v{a}, v{CS+4*p+r}, v{NM+t}, v{a}\nv_mul_f32 v{a}, v{a}, v{(36+tt) if p==0 else RS+t}")
                    else:
                        A(f"""v_fma_f32 v{a}, v{CS+4*p+r}, v{NM+t}, v{a}
                        v_fma_f32 v{a}, v{a}, v{RS+t}, v{16+4*p+r}
                        v_mul_f32 v32, {hex(f2u(LOG2E))}, v{a}
                        v_exp_f32 v32, v32
                        v_add_f32 v32, 1.0, v32
                        v_fma_f32 v32, v32, v32, 1.0
                        v_rcp_f32 v32, v32
                        v_fma_f32 v32, v32, -2.0, 1.0
                        v_mul_f32 v{a}, v{a}, v32""")
                for q in range(2):
                    a = ACC+(p*2+tt)*4+2*q
                    A(f"v_cvt_pk_bf16_f32 v{PK+p*4+tt*2+q}, v{a}, v{a+1}")
            A(f"v_permlane16_swap_b32 v{PK+p*4}, v{PK+p*4+2}\nv_permlane16_swap_b32 v{PK+p*4+1}, v{PK+p*4+3}")
        A(f"s_lshl_b32 s18, s13, 1\ns_add_u32 s18, s18, {hf}")
        if qkv:
            A(f"""s_lshl_b32 s19, s15, 6
            s_add_u32 s19, s19, s18
            s_lshl_b32 s20, s19, 10
            s_lshl_b32 s21, s3, 21
            s_add_u32 s20, s20, s21
            s_add_u32 s20, s20, {QQ}
            buffer_store_dwordx4 {vr(PK,4)}, v2, s[4:7], s20 offen
            s_mul_i32 s20, s19, {KVT}
            s_mul_i32 s21, s3, {KVL}
            s_add_u32 s20, s20, s21
            s_add_u32 s20, s20, {KV}
            buffer_store_dwordx4 {vr(PK+4,4)}, v2, s[4:7], s20 offen
            buffer_store_dwordx4 {vr(PK+8,4)}, v2, s[4:7], s20 offen offset:1024""")
        else:
            A(f"""s_mul_i32 s20, s18, {HTB}
            s_mul_i32 s21, s3, {HL}
            s_add_u32 s20, s20, s21
            s_mul_i32 s21, s15, 3072
            s_add_u32 s20, s20, s21
            s_add_u32 s20, s20, {HH}""")
            for p in range(3): A(f"buffer_store_dwordx4 {vr(PK+4*p,4)}, v2, s[4:7], s20 offen offset:{p*1024}")
    A("s_endpgm")

def gen_splitk(kind):
    wo = kind == "wo"
    n = 4 if wo else 11
    nks = 16 if wo else 44
    stubs(kind, 192, 176)
    ws_srd(256)
    if not wo:
        A(f"s_load_dwordx2 s[8:9], s[0:1], 56\ns_mov_b32 s10, {2048*512*2}\ns_mov_b32 s11, 0x00020000")
    A("v_mov_b32 v10, v0")
    wave_id(12)
    chain_role(13, 14)
    A("""v_lshlrev_b32 v2, 4, v0
    v_and_b32 v3, 15, v0
    v_lshrrev_b32 v4, 4, v0
    v_lshlrev_b32 v7, 9, v4
    v_lshl_add_u32 v7, v3, 4, v7
    s_waitcnt lgkmcnt(0)""")
    for f in range(4):
        A(f"""s_lshl_b32 s18, s14, 2
        s_add_u32 s18, s18, {f}
        s_mul_i32 s18, s18, {nks}
        s_mul_i32 s19, s12, {n}
        s_add_u32 s18, s18, s19
        s_lshl_b32 s18, s18, 10
        s_add_u32 s18, s18, {WO if wo else W2}""")
        for si in range(n):
            if si and si % 4 == 0: A("s_add_u32 s18, s18, 4096")
            A(f"buffer_load_dwordx4 {ar((si*4+f)*4,4)}, v2, s[4:7], s18 offen offset:{(si%4)*1024}")
    TS = 272; WSZ = 32*TS
    A(f"""s_mul_i32 s18, s12, {WSZ}
    v_mul_u32_u24 v8, {TS}, v3
    v_lshl_add_u32 v8, v4, 4, v8
    v_add_u32 v8, s18, v8
    v_lshrrev_b32 v11, 3, v10
    v_and_b32 v12, 7, v10
    v_mul_u32_u24 v9, {TS}, v11
    v_lshl_add_u32 v9, v12, 5, v9
    v_lshlrev_b32 v13, 9, v12
    v_lshl_add_u32 v13, v11, 4, v13
    v_lshlrev_b32 v14, 10, v11
    v_lshl_add_u32 v14, v12, 4, v14
    v_lshlrev_b32 v15, 6, v11
    v_mov_b32 v5, 0x3f803f80""")
    FR = 64; ACC = 16; RES = 48
    for hf in range(2):
        A(f"s_lshl_b32 s16, s13, 1\ns_add_u32 s16, s16, {hf}")
        if wo: A(f"s_lshl_b32 s18, s16, 15\ns_lshl_b32 s19, s3, 21\ns_add_u32 s18, s18, s19\ns_add_u32 s18, s18, {OO}")
        else: A(f"s_mul_i32 s18, s16, {HTB}\ns_mul_i32 s19, s3, {HL}\ns_add_u32 s18, s18, s19\ns_add_u32 s18, s18, {HH}")
        A(f"s_mul_i32 s19, s12, {n*2048}\ns_add_u32 s18, s18, s19")
        for si in range(n):
            if si and si % 2 == 0: A("s_add_u32 s18, s18, 4096")
            for tt in range(2):
                A(f"buffer_load_dwordx4 {vr(FR+(si*2+tt)*4,4)}, v7, s[4:7], s18 offen offset:{(si%2)*2048+tt*256}")
        A(f"""s_lshl_b32 s20, s16, 15
        s_lshl_b32 s19, s14, 12
        s_add_u32 s20, s20, s19
        s_lshl_b32 s19, s3, 21
        s_add_u32 s20, s20, s19
        s_add_u32 s18, s20, {XA if wo else X1}
        buffer_load_dwordx4 {vr(RES,4)}, v13, s[4:7], s18 offen""")
        for si in range(n):
            A(f"s_waitcnt vmcnt({2*(n-1-si)+1})")
            for f in range(4):
                for tt in range(2):
                    acc = vr(ACC+(f*2+tt)*4, 4); c = "0" if si == 0 else acc
                    A(f"v_mfma_f32_16x16x32_bf16 {acc}, {ar((si*4+f)*4,4)}, {vr(FR+(si*2+tt)*4,4)}, {c}")
        if hf: A("s_barrier")
        for f in range(4):
            for tt in range(2):
                A(f"ds_write_b128 v8, {vr(ACC+(f*2+tt)*4,4)} offset:{tt*16*TS+f*64}")
        A("s_waitcnt lgkmcnt(0)\ns_barrier")
        for w in range(4):
            for q in range(2): A(f"ds_read_b128 {vr(FR+(w*2+q)*4,4)}, v9 offset:{w*WSZ+q*16}")
        A("s_waitcnt vmcnt(0)")
        for q in range(4):
            A(f"v_lshlrev_b32 v{ACC+2*q}, 16, v{RES+q}\nv_and_b32 v{ACC+2*q+1}, 0xffff0000, v{RES+q}")
        for w in range(4):
            A(f"s_waitcnt lgkmcnt({6-2*w})")
            for e in range(8): A(f"v_add_f32 v{ACC+e}, v{ACC+e}, v{FR+w*8+e}")
        PK = 52
        for q in range(4): A(f"v_cvt_pk_bf16_f32 v{PK+q}, v{ACC+2*q}, v{ACC+2*q+1}")
        if not wo:
            A(f"s_cmp_eq_u32 s3, 1\ns_cbranch_scc1 L_w2_out{hf}")
            A(f"s_add_u32 s18, s20, {XA+0x200000}")
        else:
            A(f"s_add_u32 s18, s20, {X1}")
        A(f"buffer_store_dwordx4 {vr(PK,4)}, v13, s[4:7], s18 offen")
        A("v_mov_b32 v56, 0\nv_mov_b32 v57, 0")
        for q in range(4): A(f"v_dot2c_f32_bf16 v56, v{PK+q}, v5\nv_dot2c_f32_bf16 v57, v{PK+q}, v{PK+q}")
        for m in ("quad_perm:[1,0,3,2]", "quad_perm:[2,3,0,1]", "row_half_mirror"):
            A(f"v_add_f32_dpp v56, v56, v56 {m} row_mask:0xf bank_mask:0xf\nv_add_f32_dpp v57, v57, v57 {m} row_mask:0xf bank_mask:0xf")
        A(f"""s_lshl_b32 s18, s16, 11
        s_lshl_b32 s19, s14, 3
        s_add_u32 s18, s18, s19
        s_lshl_b32 s19, s3, 18
        s_add_u32 s18, s18, s19
        s_add_u32 s18, s18, {ST + (0x20000 if wo else 0x40000)}
        v_cmp_eq_u32 vcc, 0, v12
        s_and_saveexec_b64 s[22:23], vcc
        buffer_store_dwordx2 v[56:57], v15, s[4:7], s18 offen
        s_mov_b64 exec, s[22:23]""")
        if not wo:
            A(f"""s_branch L_w2_done{hf}
            L_w2_out{hf}:
            s_lshl_b32 s18, s16, 15
            s_lshl_b32 s19, s14, 7
            s_add_u32 s18, s18, s19
            buffer_store_dwordx4 {vr(PK,4)}, v14, s[8:11], s18 offen
            L_w2_done{hf}:""")
    A("s_endpgm")

def gen_attn():
    stubs("attn", 256, 0)
    ws_srd(256)
    wave_id(12)
    A(f"""s_and_b32 s13, s2, 7
    s_lshl_b32 s13, s13, 2
    s_add_u32 s13, s13, s12
    s_lshr_b32 s14, s2, 3
    v_lshlrev_b32 v2, 4, v0
    v_and_b32 v3, 3, v0
    v_bfe_u32 v4, v0, 2, 1
    v_lshl_add_u32 v3, v4, 3, v3
    v_bfe_u32 v4, v0, 3, 1
    v_lshl_add_u32 v3, v4, 2, v3
    v_lshlrev_b32 v3, 4, v3
    v_lshrrev_b32 v4, 5, v0
    v_lshl_add_u32 v3, v4, 9, v3
    v_add_u32 v3, 1024, v3
    v_add_u32 v4, 256, v3
    v_mov_b32 v5, 2048
    v_and_b32 v6, 16, v0
    v_cmp_eq_u32 vcc, 0, v6
    v_cndmask_b32 v3, v5, v3, vcc
    v_cndmask_b32 v4, v5, v4, vcc
    v_mov_b32 v7, 0xdddddddd
    s_lshl_b32 s15, s13, 6
    s_lshl_b32 s16, s14, 1
    s_add_u32 s15, s15, s16
    s_lshl_b32 s15, s15, 10
    s_lshl_b32 s16, s3, 21
    s_add_u32 s15, s15, s16
    s_add_u32 s15, s15, {QQ}
    s_mul_i32 s16, s13, {KVH}
    s_mul_i32 s17, s3, {KVL}
    s_add_u32 s16, s16, s17
    s_add_u32 s16, s16, {KV}
    s_mov_b32 s20, 0
    s_waitcnt lgkmcnt(0)""")
    Q = 8; S = 16; C = 48; O = 80; RING = 112; D = 8
    def Kf(t): return vr(RING + (t % D)*12, 4)
    def Vf(t, tt): return vr(RING + (t % D)*12 + 4 + 4*tt, 4)
    A(f"buffer_load_dwordx4 {vr(Q,4)}, v2, s[4:7], s15 offen\nbuffer_load_dwordx4 {vr(Q+4,4)}, v2, s[4:7], s15 offen offset:1024")
    A("L_attn_restart:")
    def load_tile(t):
        A(f"s_add_u32 s17, s16, {t*KVT}")
        A(f"buffer_load_dwordx4 {Kf(t)}, v2, s[4:7], s17 offen")
        A(f"buffer_load_dwordx4 {Vf(t,0)}, v3, s[4:7], s17 offen")
        A(f"buffer_load_dwordx4 {Vf(t,1)}, v4, s[4:7], s17 offen")
    for t in range(D-1): load_tile(t)
    for r in range(32): A(f"v_mov_b32 v{O+r}, 0")
    A(f"s_cmp_eq_u32 s20, 1\ns_cbranch_scc1 L_attn_havemax")
    A(f"s_waitcnt vmcnt({3*(D-1)-1})")
    for qb in range(2):
        A(f"v_mfma_f32_32x32x16_bf16 {vr(S+16*qb,16)}, {Kf(0)}, {vr(Q+4*qb,4)}, 0")
    for qb in range(2):
        s = S+16*qb
        A(f"v_max3_f32 v{s}, v{s}, v{s+1}, v{s+2}")
        for r in range(3, 15, 2): A(f"v_max3_f32 v{s}, v{s}, v{s+r}, v{s+r+1}")
        A(f"v_max_f32 v{s}, v{s}, v{s+15}")
        A(f"v_mov_b32 v{s+1}, v{s}\nv_permlane32_swap_b32 v{s}, v{s+1}\nv_max_f32 v{s}, v{s}, v{s+1}")
        for r in range(16): A(f"v_sub_f32 v{C+16*qb+r}, 0, v{s}")
    A("L_attn_havemax:")
    A(f"s_waitcnt vmcnt({3*(D-1)-1})")
    A(f"v_mfma_f32_32x32x16_bf16 {vr(S,16)}, {Kf(0)}, {vr(Q,4)}, {vr(C,16)}")
    A("s_nop 7\ns_nop 3")
    NT = 64
    for t in range(NT):
        for qb in range(2):
            s = S+16*qb; so = S+16*(1-qb)
            ex = lambda a, b: [A(f"v_exp_f32 v{s+r}, v{s+r}") for r in range(a, b)]
            ex(0, 2)
            if qb == 1: A(f"v_smfmac_f32_32x32x32_bf16 {vr(O,16)}, {Vf(t,1)}, {vr(so+8,8)}, v7")
            elif t > 0: A(f"v_smfmac_f32_32x32x32_bf16 {vr(O+16,16)}, {Vf(t-1,1)}, {vr(so+8,8)}, v7")
            ex(2, 3)
            if qb == 0 and t + D - 1 < NT:
                A(f"s_add_u32 s17, s16, {(t+D-1)*KVT}")
            ex(3, 4)
            if qb == 0 and t + D - 1 < NT: A(f"buffer_load_dwordx4 {Kf(t+D-1)}, v2, s[4:7], s17 offen")
            if qb == 1 and t + 1 < NT:
                left = min(NT-1, t+D-1) - (t+1)
                A(f"s_waitcnt vmcnt({3*left+2})")
            ex(4, 5)
            if qb == 0: A(f"v_mfma_f32_32x32x16_bf16 {vr(so,16)}, {Kf(t)}, {vr(Q+4,4)}, {vr(C+16,16)}")
            elif t + 1 < NT: A(f"v_mfma_f32_32x32x16_bf16 {vr(so,16)}, {Kf(t+1)}, {vr(Q,4)}, {vr(C,16)}")
            ex(5, 6)
            if qb == 0 and t + D - 1 < NT: A(f"buffer_load_dwordx4 {Vf(t+D-1,0)}, v3, s[4:7], s17 offen")
            ex(6, 7)
            if qb == 0 and t + D - 1 < NT: A(f"buffer_load_dwordx4 {Vf(t+D-1,1)}, v4, s[4:7], s17 offen")
            ex(7, 9)
            if qb == 0:
                left = min(NT-1, t+D-1) - t
                A(f"s_waitcnt vmcnt({3*left})")
            ex(9, 10)
            A(f"v_smfmac_f32_32x32x32_bf16 {vr(O+16*qb,16)}, {Vf(t,0)}, {vr(s,8)}, v7")
            ex(10, 16)
    A(f"v_smfmac_f32_32x32x32_bf16 {vr(O+16,16)}, {Vf(NT-1,1)}, {vr(S+16+8,8)}, v7")
    A("s_cmp_eq_u32 s20, 1\ns_cbranch_scc1 L_attn_fin")
    A(f"v_mov_b32 v5, 0x5f800000")
    for qb in range(2):
        o = O+16*qb
        A(f"v_add_f32 v{S+qb}, |v{o}|, |v{o+1}|")
        for r in range(2, 8): A(f"v_add_f32 v{S+qb}, v{S+qb}, |v{o+r}|")
        A(f"v_mul_f32 v{S+qb}, 0, v{S+qb}")
        A(f"v_add_f32 v{S+qb}, v{S+qb}, v{o+8}")
    A(f"v_add_f32 v{S}, v{S}, v{S+1}")
    A(f"v_cmp_nlt_f32 vcc, v{S}, v5")
    A("s_cbranch_vccz L_attn_fin")
    for qb in range(2): A(f"v_mov_b32 v{C+16*qb}, 0xff800000")
    A(f"""s_mov_b32 s17, s16
    s_mov_b32 s18, 0
L_attn_maxloop:
    buffer_load_dwordx4 {Kf(0)}, v2, s[4:7], s17 offen
    s_waitcnt vmcnt(0)""")
    for qb in range(2): A(f"v_mfma_f32_32x32x16_bf16 {vr(S+16*qb,16)}, {Kf(0)}, {vr(Q+4*qb,4)}, 0")
    for qb in range(2):
        for r in range(0, 16, 2): A(f"v_max3_f32 v{C+16*qb}, v{C+16*qb}, v{S+16*qb+r}, v{S+16*qb+r+1}")
    A(f"""s_add_u32 s17, s17, {KVT}
    s_add_u32 s18, s18, 1
    s_cmp_lt_u32 s18, 64
    s_cbranch_scc1 L_attn_maxloop""")
    for qb in range(2):
        c = C+16*qb; s = S+16*qb
        A(f"v_mov_b32 v{s}, v{c}\nv_permlane32_swap_b32 v{s}, v{c}\nv_max_f32 v{s}, v{s}, v{c}")
        for r in range(16): A(f"v_sub_f32 v{c+r}, 0, v{s}")
    A("s_mov_b32 s20, 1\ns_branch L_attn_restart")
    A("L_attn_fin:")
    A(f"""s_lshl_b32 s17, s14, 6
    s_add_u32 s17, s17, s13
    s_lshl_b32 s17, s17, 10
    s_lshl_b32 s18, s3, 21
    s_add_u32 s17, s17, s18
    s_add_u32 s17, s17, {OO}""")
    for qb in range(2):
        o = O+16*qb
        A(f"v_rcp_f32 v{o+8}, v{o+8}")
        for r in range(8): A(f"v_mul_f32 v{o+r}, v{o+r}, v{o+8}")
        for q in range(4): A(f"v_cvt_pk_bf16_f32 v{S+4*qb+q}, v{o+2*q}, v{o+2*q+1}")
        if qb: A("s_add_u32 s17, s17, 32768")
        A(f"buffer_store_dwordx4 {vr(S+4*qb,4)}, v2, s[4:7], s17 offen")
    A("s_endpgm")

def main(extra_empty=0):
    A('.amdgcn_target "amdgcn-amd-amdhsa--gfx950"\n.text')
    gen_prep(); gen_lngemm("qkv"); gen_attn(); gen_splitk("wo"); gen_lngemm("w1"); gen_splitk("w2")
    A("L_end:\ns_endpgm")
    lines, added = fix_hazards(A.lines)
    hdr = open(f"cdna_kernels/{NAME}.s.ref").read().split("; Override launch")[0]
    launches = [("prep_kernel", 376, 16384)]
    for l in range(2):
        launches += [(f"qkv{l}_kernel", 256, 65536+2048), (f"attn{l}_kernel", 256, 0), (f"wo{l}_kernel", 256, 4*32*272),
                     (f"w1{l}_kernel", 256, 65536), (f"w2{l}_kernel", 256, 4*32*272)]
    out = hdr
    for k, g, lds in launches: out += f"; @launch kernel={k} grid=({g},1,1) block=(256,1,1) lds={lds}\n"
    out += "\n".join(lines) + "\n"
    out += '.section .rodata,"a"\n'
    for label, nv, acc in kernels:
        out += f""".p2align 6
.amdhsa_kernel {label}
  .amdhsa_next_free_vgpr {nv}
  .amdhsa_next_free_sgpr 96
  .amdhsa_accum_offset {acc}
  .amdhsa_group_segment_fixed_size 0
  .amdhsa_kernarg_size 80
  .amdhsa_user_sgpr_count 2
  .amdhsa_user_sgpr_kernarg_segment_ptr 1
  .amdhsa_system_sgpr_workgroup_id_x 1
.end_amdhsa_kernel
"""
    return out, added

if __name__ == "__main__":
    out, added = main()
    path = sys.argv[1] if len(sys.argv) > 1 else f"cdna_kernels/{NAME}.s"
    open(path, "w").write(out)
    print("wrote", path, len(out), "bytes; nop states added:", added)
```
